```python
import torch

def _softmax(x, axis=-1):
    return torch.softmax(x, dim=axis)
def _gelu(x):
    return torch.nn.functional.gelu(x, approximate="tanh")
def _silu(x):
    return torch.nn.functional.silu(x)
def _sigmoid(x):
    return torch.sigmoid(x)
def _layernorm(x, axis=-1, eps=1e-5):
    m = x.mean(dim=axis, keepdim=True)
    v = x.var(dim=axis, keepdim=True, unbiased=False)
    return (x - m) / torch.sqrt(v + eps)
def _scatter_add(tgt, idx, src, axis=0):
    return tgt.clone().index_add_(axis, idx, src)
def _segment_sum(src, seg, n):
    out = torch.zeros((n,) + src.shape[1:], dtype=src.dtype)
    return out.index_add_(0, seg, src)
def _pad(x, pw):
    flat = tuple(v for pair in reversed(pw) for v in pair)
    return torch.nn.functional.pad(x, flat)

kernel_name = 'concat_heads__mha_block_cached__mha_block_cached__near_ridge'

def setup_inputs():

    _w = (lambda a: (lambda t: t.to(torch.bfloat16) if t.is_floating_point() else t)(torch.as_tensor(a)))
    def _A_setup():
        B, Sq, D = 8, 144, 448
        H, Sk, Dh = 16, 1024, 256
        return {
            "x": _w((lambda *s: torch.randn(*s, dtype=torch.bfloat16) * 0.8)(B, Sq, D)),
            "k_cache": _w((lambda *s: torch.randn(*s, dtype=torch.bfloat16) * 0.8)(B, H, Sk, Dh)),
            "v_cache": _w((lambda *s: torch.randn(*s, dtype=torch.bfloat16) * 0.05)(B, H, Sk, Dh)),
            "wq": _w((lambda *s: torch.randn(*s, dtype=torch.bfloat16) * 0.8)(D, H * Dh) * (D ** -0.5)),
            "wo": _w((lambda *s: torch.randn(*s, dtype=torch.bfloat16) * 0.05)(H * Dh, D) * ((H * Dh) ** -0.5)),
        }
    _A_in = _A_setup()

    def _B_setup():
        B, Sq, D = 8, 144, 448
        H, Sk, Dh = 16, 1024, 256
        return {
            "x": _w((lambda *s: torch.randn(*s, dtype=torch.bfloat16) * 0.8)(B, Sq, D)),
            "k_cache": _w((lambda *s: torch.randn(*s, dtype=torch.bfloat16) * 0.8)(B, H, Sk, Dh)),
            "v_cache": _w((lambda *s: torch.randn(*s, dtype=torch.bfloat16) * 0.05)(B, H, Sk, Dh)),
            "wq": _w((lambda *s: torch.randn(*s, dtype=torch.bfloat16) * 0.8)(D, H * Dh) * (D ** -0.5)),
            "wo": _w((lambda *s: torch.randn(*s, dtype=torch.bfloat16) * 0.05)(H * Dh, D) * ((H * Dh) ** -0.5)),
        }
    _B_in = _B_setup()

    return {
        "A_x": _A_in["x"],
        "A_k_cache": _A_in["k_cache"],
        "A_v_cache": _A_in["v_cache"],
        "A_wq": _A_in["wq"],
        "A_wo": _A_in["wo"],
        "B_x": _B_in["x"],
        "B_k_cache": _B_in["k_cache"],
        "B_v_cache": _B_in["v_cache"],
        "B_wq": _B_in["wq"],
        "B_wo": _B_in["wo"],
    }

def reference(A_x, A_k_cache, A_v_cache, A_wq, A_wo, B_x, B_k_cache, B_v_cache, B_wq, B_wo):
    def _A_ref(x, k_cache, v_cache, wq, wo):
        B, Sq, D = x.shape
        H, Dh = 16, 256
        q = (lambda x, *d: x.permute(*d))((x @ wq).reshape(B, Sq, H, Dh), 0, 2, 1, 3)
        scores = torch.einsum("bhqd,bhkd->bhqk", q, k_cache) * (Dh ** -0.5)
        p = _softmax(scores, axis=-1)
        o = torch.einsum("bhqk,bhkd->bhqd", p, v_cache)
        return (lambda x, *d: x.permute(*d))(o, 0, 2, 1, 3).reshape(B, Sq, H * Dh) @ wo

    def _B_ref(x, k_cache, v_cache, wq, wo):
        B, Sq, D = x.shape
        H, Dh = 16, 256
        q = (lambda x, *d: x.permute(*d))((x @ wq).reshape(B, Sq, H, Dh), 0, 2, 1, 3)
        scores = torch.einsum("bhqd,bhkd->bhqk", q, k_cache) * (Dh ** -0.5)
        p = _softmax(scores, axis=-1)
        o = torch.einsum("bhqk,bhkd->bhqd", p, v_cache)
        return (lambda x, *d: x.permute(*d))(o, 0, 2, 1, 3).reshape(B, Sq, H * Dh) @ wo

    a = _A_ref(A_x, A_k_cache, A_v_cache, A_wq, A_wo)
    b = _B_ref(B_x, B_k_cache, B_v_cache, B_wq, B_wo)
    return torch.concatenate([a, b], axis=-1)
```

```python
import re


def R(prefix, lo, n=1):
    if n == 1:
        return f"{prefix}{lo}"
    return f"{prefix}[{lo}:{lo + n - 1}]"


def regs(prefix, lo, n=1):
    return [f"{prefix}{lo + i}" for i in range(n)]


_OP_RE = re.compile(r"^([vas])(\d+)$|^([vas])\[(\d+):(\d+)\]$")


def expand(op):
    op = op.strip()
    if op.startswith("-"):
        op = op[1:]
    if op in ("vcc", "exec", "m0", "scc"):
        return [op]
    m = _OP_RE.match(op)
    if not m:
        return []
    if m.group(1):
        return [m.group(1) + m.group(2)]
    return [f"{m.group(3)}{i}" for i in range(int(m.group(4)), int(m.group(5)) + 1)]


class Ins:
    __slots__ = ("text", "kind", "defs", "uses", "tok", "srcc", "passes", "pos")

    def __init__(self, text, kind, defs=(), uses=(), tok=None, srcc=()):
        self.text = text
        self.kind = kind
        self.defs = set(defs)
        self.uses = set(uses)
        self.tok = tok
        self.srcc = set(srcc)
        self.passes = 0
        self.pos = 0


TRANS = ("v_exp_f32", "v_log_f32", "v_rcp_f32", "v_rsq_f32", "v_sqrt_f32")


class Prog:
    def __init__(self):
        self.ins = []
        self.ntok = 0

    def add(self, i):
        self.ins.append(i)
        return i

    def raw(self, text, kind="raw", defs=(), uses=()):
        return self.add(Ins(text, kind, defs, uses))

    def label(self, name):
        return self.add(Ins(name + ":", "label"))

    def comment(self, text):
        return self.add(Ins("; " + text, "comment"))

    def valu(self, op, dst, *src, extra=""):
        d = expand(dst)
        u = []
        for s in src:
            u += expand(s)
        kind = "valu"
        if op in TRANS:
            kind = "trans"
        if op.startswith("v_permlane"):
            kind = "permlane"
            u += d
            d = d + expand(src[0])
        if op.startswith("v_fmac") or op.startswith("v_dot2c"):
            u += d
        if op in ("v_readfirstlane_b32", "v_readlane_b32"):
            kind = "readlane"
        if op.startswith("v_cndmask") and len(src) == 3:
            pass
        txt = f"{op} {dst}, " + ", ".join(src) + (" " + extra if extra else "")
        return self.add(Ins(txt, kind, d, u))

    def vcmp(self, op, dst, a, b):
        return self.add(Ins(f"{op} {dst}, {a}, {b}", "valu", expand(dst), expand(a) + expand(b)))

    def salu(self, op, dst, *src, scc=True):
        d = expand(dst) if dst is not None else []
        u = []
        for s in src:
            u += expand(s)
        if op.startswith("s_cmp"):
            d = ["scc"]
            u = expand(dst) + u
        elif op in ("s_cselect_b32", "s_cselect_b64", "s_addc_u32", "s_subb_u32"):
            u.append("scc")
        ops = ([dst] if dst is not None else []) + list(src)
        return self.add(Ins(f"{op} " + ", ".join(ops), "salu", d, u))

    def mfma(self, d, a, b, c):
        cc = expand(c)
        i = Ins(f"v_mfma_f32_16x16x32_bf16 {d}, {a}, {b}, {c}", "mfma", expand(d),
                expand(a) + expand(b) + cc, srcc=cc)
        i.passes = 4
        return self.add(i)

    def mfma32(self, d, a, b, c):
        cc = expand(c)
        i = Ins(f"v_mfma_f32_32x32x16_bf16 {d}, {a}, {b}, {c}", "mfma", expand(d),
                expand(a) + expand(b) + cc, srcc=cc)
        i.passes = 8
        return self.add(i)

    def ds_read(self, op, dst, addr, offset=0):
        assert 0 <= offset < 65536, offset
        o = f" offset:{offset}" if offset else ""
        return self.add(Ins(f"{op} {dst}, {addr}{o}", "ds_read", expand(dst), expand(addr)))

    def ds_write(self, op, addr, src, offset=0):
        assert 0 <= offset < 65536, offset
        o = f" offset:{offset}" if offset else ""
        return self.add(Ins(f"{op} {addr}, {src}{o}", "ds_write", [], expand(addr) + expand(src)))

    def newtok(self):
        self.ntok += 1
        return self.ntok

    def buf_load(self, n, dst, voff, srd, soff, offset=0, flags="", tok=None):
        assert 0 <= offset < 4096
        op = {1: "buffer_load_dword", 2: "buffer_load_dwordx2", 4: "buffer_load_dwordx4"}[n]
        addr = f"{voff}, {srd}, {soff} offen" if voff else f"off, {srd}, {soff}"
        o = f" offset:{offset}" if offset else ""
        f = f" {flags}" if flags else ""
        return self.add(Ins(f"{op} {dst}, {addr}{o}{f}", "vm_load", expand(dst),
                            (expand(voff) if voff else []) + expand(srd) + expand(soff), tok=tok))

    def buf_dma(self, voff, srd, soff, offset=0, flags="", tok=None):
        assert 0 <= offset < 4096
        o = f" offset:{offset}" if offset else ""
        f = f" {flags}" if flags else ""
        return self.add(Ins(f"buffer_load_dwordx4 {voff}, {srd}, {soff} offen{o}{f} lds", "vm_dma", [],
                            expand(voff) + expand(srd) + expand(soff) + ["m0"], tok=tok))

    def buf_store(self, n, src, voff, srd, soff, offset=0, flags="", tok=None):
        assert 0 <= offset < 4096
        op = {1: "buffer_store_dword", 2: "buffer_store_dwordx2", 4: "buffer_store_dwordx4"}[n]
        addr = f"{voff}, {srd}, {soff} offen" if voff else f"off, {srd}, {soff}"
        o = f" offset:{offset}" if offset else ""
        f = f" {flags}" if flags else ""
        i = Ins(f"{op} {src}, {addr}{o}{f}", "vm_store", [],
                expand(src) + (expand(voff) if voff else []) + expand(srd) + expand(soff), tok=tok)
        i.srcc = set(expand(src)) if n >= 3 else set()
        return self.add(i)

    def wait_vm(self, tok):
        return self.add(Ins("", "wait_vm_tok", tok=tok))

    def wait_vm_all(self):
        return self.add(Ins("", "wait_vm_all"))

    def wait_lgkm_all(self):
        return self.add(Ins("", "wait_lgkm_all"))

    def barrier(self):
        return self.add(Ins("s_barrier", "barrier"))

    def nop(self, n):
        return self.add(Ins(f"s_nop {n}", "nop"))

    def branch(self, op, target):
        u = []
        if "vcc" in op:
            u = ["vcc"]
        if "scc" in op:
            u = ["scc"]
        if "exec" in op:
            u = ["exec"]
        return self.add(Ins(f"{op} {target}", "branch", [], u))

    def opaque(self, lines, defs=(), uses=()):
        for ln in lines:
            self.add(Ins(ln, "opaque", defs, uses))

    def site(self, target, ret, defs):
        return self.add(Ins(f"s_cbranch_vccnz {target}\n{ret}:", "site", defs, ["vcc"] + list(defs)))

    def interleave(self, rd_lead=5, raw_lat=3, wexp=2.0, wdma=1.0, **_):
        VEC = ("valu", "trans", "permlane", "readlane", "ds_read", "ds_write", "vm_load", "vm_dma", "vm_store")
        SCA = ("salu", "nop", "site", "comment")
        out = []

        def weight(i):
            if i.kind == "trans":
                return wexp
            if i.kind in ("vm_dma", "vm_load", "vm_store"):
                return wdma
            if i.kind in VEC:
                return 1.0
            if i.kind == "comment":
                return 0.0
            return 0.25

        def flush(region):
            M = [(k, i) for k, i in enumerate(region) if i.kind == "mfma"]
            O = [(k, i) for k, i in enumerate(region) if i.kind != "mfma"]
            n, r = len(M), len(O)
            if n < 2 or r == 0:
                out.extend(region)
                return
            lo = [0] * (n + 1)
            slo = [0] * (n + 1)
            hi = [r] * (n + 1)
            for mi, (mk, m) in enumerate(M):
                for oi, (ok_, o) in enumerate(O):
                    if abs(ok_ - mk) > 160:
                        continue
                    if ok_ < mk:
                        raw = o.defs & m.uses
                        if raw or (o.defs & m.defs) or (o.uses & m.defs):
                            lo[mi] = max(lo[mi], oi + 1)
                            if raw and o.kind == "ds_read":
                                k = max(0, mi - rd_lead)
                                slo[k] = max(slo[k], oi + 1)
                            elif raw and o.kind in ("valu", "trans", "permlane"):
                                k = max(0, mi - 1)
                                slo[k] = max(slo[k], oi + 1)
                    else:
                        raw = m.defs & (o.uses | o.defs)
                        war = m.uses & o.defs
                        if raw or war:
                            lat = 0
                            if raw and o.kind != "site":
                                lat = raw_lat + (2 if m.passes == 8 else 0)
                            elif war and o.kind in ("valu", "trans", "permlane") and (m.srcc & o.defs):
                                lat = 1
                            for k in range(0, min(n, mi + lat) + 1):
                                if hi[k] > oi:
                                    hi[k] = oi
            hard_hi = [r] * (n + 1)
            for k in range(1, n + 1):
                lo[k] = max(lo[k], lo[k - 1])
                slo[k] = max(slo[k], slo[k - 1])
            for k in range(n - 1, -1, -1):
                hi[k] = min(hi[k], hi[k + 1])
            lo[n] = slo[n] = hi[n] = r
            L = [0] * (n + 1)
            H = [0] * (n + 1)
            for k in range(n + 1):
                H[k] = max(hi[k], lo[k])
                L[k] = max(lo[k], min(slo[k], H[k]))
            for k in range(1, n + 1):
                L[k] = max(L[k], L[k - 1])
                H[k] = max(H[k], L[k])
            cw = [0.0]
            for _, o in O:
                cw.append(cw[-1] + weight(o))
            cnt = [0] * (n + 1)
            k0, w0 = -1, 0.0
            k = 0
            tgt = [0.0] * (n + 1)
            while k0 < n:
                smin, smax = -1e18, 1e18
                kmin = kmax = None
                end = None
                for kk in range(k0 + 1, n + 1):
                    d = kk - k0
                    a = (cw[L[kk]] - w0) / d
                    b = (cw[H[kk]] - w0) / d
                    if a > smax:
                        end = (kmax, smax, cw[H[kmax]])
                        break
                    if b < smin:
                        end = (kmin, smin, cw[L[kmin]])
                        break
                    if a >= smin:
                        smin, kmin = a, kk
                    if b <= smax:
                        smax, kmax = b, kk
                if end is None:
                    end = (n, (cw[r] - w0) / (n - k0), cw[r])
                ke, sl, we = end
                for kk in range(k0 + 1, ke + 1):
                    tgt[kk] = w0 + sl * (kk - k0)
                k0, w0 = ke, we
            c = 0
            for kk in range(n + 1):
                while c < H[kk] and (c < L[kk] or cw[c + 1] <= tgt[kk] + 0.3):
                    c += 1
                cnt[kk] = c
            cnt[n] = r
            oi = 0
            for kk in range(n):
                while oi < cnt[kk]:
                    out.append(O[oi][1])
                    oi += 1
                out.append(M[kk][1])
            while oi < r:
                out.append(O[oi][1])
                oi += 1
        region = []
        for i in self.ins:
            if i.kind == "mfma" or i.kind in VEC or i.kind in SCA:
                region.append(i)
            else:
                flush(region)
                region = []
                out.append(i)
        flush(region)
        self.ins = out

    def insert_waits(self, verbose=False, batch=10):
        out = []
        pos = 0
        lq = []
        vq = []
        maxv = 0

        def emit_wait(nv, nl):
            parts = []
            if nv is not None:
                parts.append(f"vmcnt({min(nv, 63)})")
            if nl is not None:
                parts.append(f"lgkmcnt({min(nl, 15)})")
            out.append(Ins("s_waitcnt " + " ".join(parts), "wait"))

        for i in self.ins:
            k = i.kind
            if k == "wait_vm_tok":
                idx = -1
                for j, o in enumerate(vq):
                    if o.tok == i.tok:
                        idx = j
                if idx >= 0:
                    n = len(vq) - 1 - idx
                    emit_wait(n, None)
                    vq = vq[idx + 1:]
                continue
            if k == "wait_vm_all":
                emit_wait(0, None)
                vq = []
                continue
            if k == "wait_lgkm_all":
                if lq:
                    emit_wait(None, 0)
                    lq = []
                continue
            if k in ("label", "comment"):
                out.append(i)
                continue
            touch = i.defs | i.uses
            nl = nv = None
            lidx = -1
            pos += 1
            i.pos = pos
            for j, o in enumerate(lq):
                if o.defs & touch:
                    lidx = j
            if lidx >= 0 and batch:
                while lidx + 1 < len(lq) and pos - lq[lidx + 1].pos >= batch:
                    lidx += 1
            if lidx >= 0:
                nl = len(lq) - 1 - lidx
                if nl > 15:
                    nl = 15
                    lq = lq[len(lq) - 15:]
                else:
                    lq = lq[lidx + 1:]
            vidx = -1
            for j, o in enumerate(vq):
                if o.defs & touch:
                    vidx = j
            if vidx >= 0:
                nv = len(vq) - 1 - vidx
                vq = vq[vidx + 1:]
            if nl is not None or nv is not None:
                emit_wait(nv, nl)
            out.append(i)
            if k in ("ds_read", "ds_write"):
                lq.append(i)
            if k in ("vm_load", "vm_dma", "vm_store"):
                vq.append(i)
                maxv = max(maxv, len(vq))
                assert len(vq) <= 63, f"too many vmem ops outstanding at: {i.text}"
        self.ins = out
        if verbose:
            print("max vmem outstanding", maxv)

    def insert_nops(self):
        out = []
        hist = []

        def states(i):
            if i.kind == "nop":
                return int(i.text.split()[1]) + 1
            if i.kind == "mfma":
                return 2 if i.passes == 4 else 3
            return 1

        VAL = ("valu", "trans", "permlane", "readlane")
        for i in self.ins:
            if i.kind in ("label", "comment"):
                out.append(i)
                continue
            need = 0
            dist = 0
            for p in reversed(hist):
                if dist >= 24:
                    break
                req = 0
                pk = p.kind
                k = i.kind
                touch = i.defs | i.uses
                if pk in VAL:
                    vd = {r for r in p.defs if r[0] in "va" and r != "vcc"}
                    sd = {r for r in p.defs if r[0] == "s" or r == "vcc"}
                    if k == "mfma" and vd & i.uses:
                        req = max(req, 2)
                    if k == "permlane" and vd & i.uses:
                        req = max(req, 2)
                    if k == "readlane" and vd & i.uses:
                        req = max(req, 1)
                    if pk == "trans" and k in VAL and vd & touch:
                        req = max(req, 1)
                    if k in VAL and sd & i.uses:
                        req = max(req, 2)
                    if k in ("vm_load", "vm_dma", "vm_store") and sd & i.uses:
                        req = max(req, 5)
                    if "dpp" in i.text and vd & i.uses:
                        req = max(req, 2)
                if pk == "mfma":
                    big = p.passes == 8
                    if k == "mfma":
                        ab = i.uses - i.srcc
                        if p.defs & ab:
                            req = max(req, 12 if big else 8)
                        if p.defs & i.srcc and (p.defs != i.srcc or p.passes != i.passes):
                            req = max(req, 10 if big else 6)
                        if p.defs & i.defs and not (p.defs & i.srcc):
                            req = max(req, 10 if big else 6)
                    elif k in VAL or k in ("vm_load", "vm_store", "vm_dma", "ds_read", "ds_write"):
                        if p.defs & touch:
                            req = max(req, 12 if big else 8)
                        if k in VAL and p.srcc & i.defs:
                            req = max(req, 7 if big else 3)
                if pk == "salu" and "m0" in p.defs and k == "vm_dma":
                    req = max(req, 1)
                if pk == "vm_store" and p.srcc & i.defs:
                    req = max(req, 2)
                if req > dist:
                    need = max(need, req - dist)
                dist += states(p)
            while need > 0:
                n = min(need, 16)
                np_ = Ins(f"s_nop {n - 1}", "nop")
                out.append(np_)
                hist.append(np_)
                need -= n
            out.append(i)
            hist.append(i)
            if len(hist) > 40:
                hist = hist[-40:]
        self.ins = out

    def text(self):
        lines = []
        for i in self.ins:
            if i.kind in ("wait_vm_tok", "wait_vm_all", "wait_lgkm_all"):
                raise RuntimeError("run insert_waits first")
            lines.append(i.text)
        return "\n".join(lines) + "\n"

    def stats(self):
        from collections import Counter
        return Counter(i.kind for i in self.ins)
```

```python
import sys, math, struct
from asmlib import Prog, Ins, R, expand

KNAME = "concat_heads__mha_block_cached__mha_block_cached__near_ridge_kernel"

BLK = 1056
SLOT = 32 * BLK
NSLOT = 3
XB = NSLOT * SLOT
XBUF = 20480
LDS_BYTES = 163840
M_QN = XB + XBUF
M_WO = XB
M_ST = XB + 32768
M_NP = XB + 36864

OF_BASE = 0
OF_BYTES = 2 * 4 * 16 * 2 * 72 * 1024
WF_BASE = OF_BYTES
WF_BYTES = 2 * 4 * 16 * 2 * 28 * 1024
FL_BASE = WF_BASE + WF_BYTES
FL_BYTES = 64 * 128
RF_BASE = FL_BASE + FL_BYTES
RF_BYTES = 2 * 512
DUMP_BASE = RF_BASE + RF_BYTES
WS_USED = DUMP_BASE


def f2u(x):
    return struct.unpack("<I", struct.pack("<f", x))[0]


S_W = "s3"
SRD_K, SRD_V, SRD_WQ, SRD_X = "s[8:11]", "s[12:15]", "s[16:19]", "s[20:23]"
SRD_WO, SRD_WS, SRD_OUT, SRD_DBG = "s[24:27]", "s[28:31]", "s[32:35]", "s[36:39]"
S_RET = "s[40:41]"
S_BR, S_B, S_H, S_N, S_R, S_C = "s42", "s43", "s44", "s45", "s46", "s47"
S_OFF = "s48"
S_LW = "s49"
S_T = "s50"
S_TMP = "s51"
S_CC = "s[52:53]"
S_WW, S_KW, S_VW = "s54", "s55", "s56"
S_OFB = "s57"
S_WFD = "s58"
S_FLG = "s59"
SRD_CODE = "s[60:63]"
S_LWW = "s64"
S_XW = "s65"
S_XL = "s66"
S_ROT, S_RW, S_RX = "s90", "s91", "s92"
S_OFT, S_WFT = "s93", "s94"
S_SPIN = "s95"
S_EX = "s[96:97]"
S_NON = "s67"

V_TID = "v0"
V_L16 = "v1"
V_DV = "v2"
V_DK = "v3"
V_KA = "v4"
V_KN = "v5"
V_M = "v6"
V_T0, V_T1 = "v7", "v8"
V_CHK = "v9"
ACC = {"A": (12, 16), "B": (20, 24), "N": (28, 28)}
NM = {"A": 32, "B": 36, "N": 40}
P_V0 = 44
NBV = 42
PB_A0 = 180
PN_A0 = 224
A_ONE = 160
A_L = {"A": 164, "B": 168, "N": 172}
A_RP = 180


class G:
    def __init__(self, opt):
        self.o = opt
        self.p = Prog()
        self.LA = 2
        self.in_stream = False
        self.stubs = []
        self.nsite = 0
        self.dma_tok = {}

    def preg(self, X, kt):
        if X == "A":
            return ("v", P_V0 + 2 * kt)
        if X == "B":
            if kt < NBV:
                return ("v", P_V0 + 128 + 2 * kt)
            return ("a", PB_A0 + 2 * (kt - NBV))
        return ("a", PN_A0 + 2 * kt)

    def pfrag(self, X, kt0):
        a = self.preg(X, kt0)
        b = self.preg(X, kt0 + 1)
        assert a[0] == b[0] and b[1] == a[1] + 2
        return R(a[0], a[1], 4)

    def slot_of(self, n):
        return n % NSLOT

    def rot_step(self, n):
        p = self.p
        if n > 0:
            p.salu("s_add_u32", S_ROT, S_ROT, "1")
            p.salu("s_cmp_eq_u32", S_ROT, "7")
            p.salu("s_cselect_b32", S_ROT, "0", S_ROT)
        p.salu("s_lshl_b32", S_RW, S_ROT, "19")
        p.salu("s_add_u32", S_RW, S_RW, S_WW)
        p.salu("s_lshl_b32", S_RX, S_ROT, "7")
        p.salu("s_add_u32", S_RX, S_RX, S_XW)

    VDW = 28
    VDX = 32

    def dma_list(self, n):
        p = self.p
        tok = p.newtok()
        self.dma_tok[n] = tok
        sl = self.slot_of(n)
        out = []
        wflags = self.o.get("wq_flags", "")
        for m in range(8):
            def g(m=m):
                if n < 7:
                    p.salu("s_add_u32", "m0", S_LWW, str(sl * SLOT + m * 1024))
                    p.salu("s_add_u32", S_OFF, S_RW, str(m * 16384))
                    p.buf_dma(f"v{self.VDW + (m & 1) + 2 * (m >> 2)}", SRD_WQ, S_OFF, flags=wflags, tok=tok)
                elif n < 23:
                    st = n - 7
                    p.salu("s_add_u32", "m0", S_LW, str(sl * SLOT + m * BLK))
                    p.salu("s_add_u32", S_OFF, S_KW, str(st * 32768 + m * 1024))
                    p.buf_dma(V_DK, SRD_K, S_OFF, flags=self.o.get("kvf", "nt").replace("none", ""), tok=tok)
                else:
                    v = n - 23
                    j, sv = v // 4, v % 4
                    p.salu("s_add_u32", "m0", S_LW, str(sl * SLOT + m * BLK))
                    p.salu("s_add_u32", S_OFF, S_VW, str(sv * 131072 + m * 4096 + j * 128))
                    p.buf_dma(V_DV, SRD_V, S_OFF, flags=self.o.get("kvf", "nt").replace("none", ""), tok=tok)
            out.append(g)
        if n < 7:
            xs = []
            for m in range(5):
                def gx(m=m):
                    p.salu("s_add_u32", "m0", S_XL, str((n % 3) * XBUF + m * 1024))
                    p.salu("s_add_u32", S_OFF, S_RX, str(m * 7168))
                    p.buf_dma(f"v{self.VDX + (m & 1)}", SRD_X, S_OFF, tok=tok)
                xs.append(gx)
            first = xs[0]

            def x0():
                self.rot_step(n)
                first()
            out = [x0, out[0], xs[1], out[1], xs[2], out[2], xs[3], out[3], xs[4], out[4], out[5], out[6], out[7]]
        return out

    def build_dma_queue(self):
        self.dq = []
        self.dbase = []
        for n in range(39):
            self.dbase.append(len(self.dq))
            lst = self.dma_list(n)
            for f in lst:
                f.is_dma = True
                f.stage = n
            self.dq += lst
        self.dbase += [len(self.dq)] * 4
        self.dptr = 0

    def lam(self, n):
        o = self.o
        if n == 0:
            return o.get("lam0", 0)
        if n < 6:
            return o.get("lamw", 9)
        return o.get("lam", 6)

    def dma_until(self, n):
        end = min(self.dbase[n + 1] + self.lam(n), self.dbase[n + 2], len(self.dq))
        end = max(end, self.dbase[min(n + 1, 39)])
        out = self.dq[self.dptr:end]
        self.dptr = max(self.dptr, end)
        return out

    def stage_start(self, n, lgkm=False, toks=()):
        p = self.p
        p.label(f"L_stage{n}")
        if self.o.get("stamps") == 2:
            self.stamp(16 + 3 * n, cyc=True)
        p.wait_vm(self.dma_tok[n])
        for t in toks:
            p.wait_vm(t)
        if lgkm:
            p.wait_lgkm_all()
        if self.o.get("stamps") == 2:
            self.stamp(17 + 3 * n, cyc=True)
        p.barrier()
        if self.o.get("stamps") == 2:
            self.stamp(18 + 3 * n, cyc=True)

    def stamp(self, idx, cyc=False, reg=None):
        if not self.o.get("stamps"):
            return
        p = self.p
        lbl = f"L_st{idx}"
        if self.o.get("stamps") in (1, 2, 4) and self.o.get("ldsstamp", 1):
            p.opaque([
                f"s_cmp_lg_u32 {S_W}, 0",
                f"s_cbranch_scc1 {lbl}",
                ("s_memtime s[98:99]" if cyc else "s_memrealtime s[98:99]"),
                "s_waitcnt lgkmcnt(0)",
                f"v_mov_b32 v10, {reg or 's98'}",
                f"v_mov_b32 v11, {162816 + idx * 4}",
                "ds_write_b32 v11, v10",
            ])
            p.label(lbl)
            return
        if self.o.get("stamps") == 3:
            if cyc or idx == 1:
                return
            slot = {12: 1, 0: 2, 2: 3, 3: 4, 4: 5, 5: 6, 6: 7, 7: 8, 8: 9, 9: 10}[idx]
            p.opaque([
                f"s_cmp_lg_u32 {S_W}, 0",
                f"s_cbranch_scc1 {lbl}",
                "s_memrealtime s[98:99]",
                "s_waitcnt lgkmcnt(0)",
                (f"s_not_b32 s98, {reg}" if reg else "s_nop 0"),
                "v_mov_b32 v10, s98",
                f"s_mov_b64 {S_EX}, exec",
                "s_mov_b64 exec, 1",
                f"s_and_b32 {S_TMP}, s2, 31",
                f"s_cmp_lg_u32 {S_TMP}, 0",
                f"s_cbranch_scc1 {lbl}_x",
                f"buffer_atomic_umax v10, off, {SRD_DBG}, 0 offset:{slot * 4}",
                f"{lbl}_x:",
                f"s_mov_b64 exec, {S_EX}",
            ])
            p.label(lbl)
            return
        p.opaque([
            f"s_cmp_lg_u32 {S_W}, 0",
            f"s_cbranch_scc1 {lbl}",
            ("s_memtime s[98:99]" if cyc else "s_memrealtime s[98:99]"),
            "s_waitcnt lgkmcnt(0)",
            f"v_mov_b32 v10, {reg or 's98'}",
            f"s_lshl_b32 {S_TMP}, s2, 10",
            f"s_add_u32 {S_TMP}, {S_TMP}, {DUMP_BASE + idx * 4}",
            f"s_mov_b64 {S_EX}, exec",
            "s_mov_b64 exec, 1",
            f"buffer_store_dword v10, off, {SRD_WS}, {S_TMP}",
            f"s_mov_b64 exec, {S_EX}",
        ])
        p.label(lbl)

    def prologue(self):
        p = self.p
        o = self.o
        if o.get("stamps"):
            p.raw("s_memrealtime s[100:101]", "smem")
        p.raw("s_cmp_ge_u32 s2, 256", "salu", ["scc"], ["s2"])
        p.branch("s_cbranch_scc1", "L_done")
        p.raw("s_load_dwordx8 s[68:75], s[0:1], 0", "smem")
        p.raw("s_load_dwordx8 s[76:83], s[0:1], 40", "smem")
        p.raw("s_load_dwordx2 s[4:5], s[0:1], 32", "smem")
        p.raw("s_load_dwordx2 s[6:7], s[0:1], 72", "smem")
        p.raw("s_load_dwordx4 s[84:87], s[0:1], 80", "smem")
        p.raw("s_load_dwordx2 s[88:89], s[0:1], 96", "smem")
        p.valu("v_lshrrev_b32", V_T0, "6", V_TID)
        p.valu("v_and_b32", V_TID, "63", V_TID)
        p.valu("v_readfirstlane_b32", S_W, V_T0)
        p.salu("s_and_b32", "s98", "s2", "7")
        p.salu("s_lshr_b32", "s99", "s2", "3")
        p.salu("s_lshr_b32", S_BR, "s98", "2")
        p.salu("s_and_b32", "s98", "s98", "3")
        p.salu("s_and_b32", S_TMP, "s99", "3")
        p.salu("s_lshl_b32", S_H, "s98", "2")
        p.salu("s_add_u32", S_H, S_H, S_TMP)
        p.salu("s_lshr_b32", S_B, "s99", "2")
        p.salu("s_lshl_b32", S_N, "s98", "5")
        p.salu("s_add_u32", S_N, S_N, "s99")
        if o.get("rot", True):
            p.salu("s_lshl_b32", S_TMP, S_TMP, "1")
            p.salu("s_add_u32", S_ROT, S_B, S_TMP)
            p.salu("s_cmp_ge_u32", S_ROT, "7")
            p.salu("s_cselect_b32", S_TMP, "7", "0")
            p.salu("s_sub_u32", S_ROT, S_ROT, S_TMP)
        else:
            p.salu("s_mov_b32", S_ROT, "0")
        lane = V_TID
        p.valu("v_lshlrev_b32", V_L16, "4", lane)
        p.salu("s_mul_i32", S_LW, S_W, str(8 * BLK))
        p.salu("s_lshl_b32", S_LWW, S_W, "13")
        p.salu("s_lshl_b32", S_WW, S_W, "17")
        p.salu("s_mul_i32", S_XW, S_W, str(5 * 7168))
        p.salu("s_mul_i32", S_XL, S_W, str(5 * 1024))
        p.salu("s_add_u32", S_XL, S_XL, str(XB))
        b, c = "v10", "v11"
        p.valu("v_lshrrev_b32", b, "5", lane)
        p.valu("v_and_b32", c, "31", lane)
        p.valu("v_lshlrev_b32", V_T0, "2", b)
        p.valu("v_xor_b32", V_T0, c, V_T0)
        p.valu("v_lshlrev_b32", V_T1, "13", b)
        for m1 in range(2):
            for m4 in range(2):
                r = f"v{self.VDW + m1 + 2 * m4}"
                p.valu("v_xor_b32", r, str(8 * m1 + 2 * m4), V_T0)
                p.valu("v_lshl_add_u32", r, r, "4", V_T1)
        p.valu("v_lshrrev_b32", V_T0, "3", lane)
        p.valu("v_mul_u32_u24", V_T1, "896", V_T0)
        p.valu("v_lshrrev_b32", V_T0, "1", V_T0)
        p.valu("v_and_b32", "v12", "7", lane)
        p.valu("v_xor_b32", V_T0, V_T0, "v12")
        p.salu("s_and_b32", S_TMP, S_W, "1")
        p.salu("s_lshl_b32", S_TMP, S_TMP, "2")
        p.valu("v_xor_b32", "v12", S_TMP, V_T0)
        p.valu("v_lshl_add_u32", f"v{self.VDX}", "v12", "4", V_T1)
        p.valu("v_xor_b32", "v12", "4", "v12")
        p.valu("v_lshl_add_u32", f"v{self.VDX + 1}", "v12", "4", V_T1)
        p.raw("s_waitcnt lgkmcnt(0)", "wait")
        if o.get("stamps"):
            p.raw("s_memrealtime s[96:97]", "smem")
        p.salu("s_cmp_eq_u32", S_BR, "0")
        for (dst, a, b_) in (("s16", "s74", "s82"), ("s17", "s75", "s83"), ("s20", "s68", "s76"), ("s21", "s69", "s77"),
                             ("s8", "s70", "s78"), ("s9", "s71", "s79"), ("s12", "s72", "s80"), ("s13", "s73", "s81"),
                             ("s24", "s4", "s6"), ("s25", "s5", "s7")):
            p.salu("s_cselect_b32", dst, a, b_)
        p.salu("s_lshl_b32", "s4", S_H, "9")
        p.salu("s_add_u32", "s16", "s16", "s4")
        p.salu("s_addc_u32", "s17", "s17", "0")
        p.salu("s_sub_u32", "s18", str(448 * 8192), "s4")
        p.salu("s_mov_b32", "s19", "0x20000")
        p.salu("s_mul_i32", "s4", S_B, "129024")
        p.salu("s_add_u32", "s20", "s20", "s4")
        p.salu("s_addc_u32", "s21", "s21", "0")
        p.salu("s_mov_b32", "s22", "129024")
        p.salu("s_mov_b32", "s23", "0x20000")

    def prologue_loads(self):
        self.build_dma_queue()
        for i, g in enumerate(self.dma_until(0)):
            g()
            if i == 0 and self.o.get("stamps"):
                self.p.raw("s_memrealtime s[94:95]", "smem")
        if self.o.get("stamps"):
            self.p.raw("s_memrealtime s[92:93]" if False else "s_memrealtime s[88:89]" if False else "s_nop 0", "raw")

    VWA = 12

    def prologue_rest(self):
        p = self.p
        lane = V_TID
        p.salu("s_lshl_b32", S_KW, S_W, "13")
        p.salu("s_lshl_b32", S_VW, S_W, "15")
        p.salu("s_mov_b32", S_T, hex(f2u(8.0)))
        c = math.log2(math.e) / 16.0
        p.salu("s_mov_b32", "s52", hex(f2u(c)))
        p.salu("s_mov_b32", "s53", hex(f2u(c)))
        p.salu("s_lshl_b32", "s4", S_B, "4")
        p.salu("s_add_u32", "s4", "s4", S_H)
        p.salu("s_lshl_b32", "s4", "s4", "19")
        p.salu("s_add_u32", "s8", "s8", "s4")
        p.salu("s_addc_u32", "s9", "s9", "0")
        p.salu("s_mov_b32", "s10", "524288")
        p.salu("s_mov_b32", "s11", "0x20000")
        p.salu("s_add_u32", "s12", "s12", "s4")
        p.salu("s_addc_u32", "s13", "s13", "0")
        p.salu("s_mov_b32", "s14", "524288")
        p.salu("s_mov_b32", "s15", "0x20000")
        p.salu("s_mov_b32", "s26", str(4096 * 896))
        p.salu("s_mov_b32", "s27", "0x20000")
        p.salu("s_mov_b32", "s28", "s88")
        p.salu("s_mov_b32", "s29", "s89")
        p.salu("s_mov_b32", "s30", str(WS_USED + (1 << 20)))
        p.salu("s_mov_b32", "s31", "0x20000")
        p.salu("s_mov_b32", "s32", "s84")
        p.salu("s_mov_b32", "s33", "s85")
        p.salu("s_mov_b32", "s34", str(8 * 144 * 896 * 2))
        p.salu("s_mov_b32", "s35", "0x20000")
        p.salu("s_mov_b32", "s36", "s86")
        p.salu("s_mov_b32", "s37", "s87")
        p.salu("s_mov_b32", "s38", "256")
        p.salu("s_mov_b32", "s39", "0x20000")
        p.opaque([
            "s_cmp_lg_u32 s2, 0",
            "s_cbranch_scc1 L_nonce_done",
            f"s_cmp_lg_u32 {S_W}, 0",
            "s_cbranch_scc1 L_nonce_done",
            "s_memrealtime s[98:99]",
            "s_waitcnt lgkmcnt(0)",
            "s_or_b32 s98, s98, 1",
            "v_mov_b32 v10, s98",
            "s_mov_b64 exec, 1",
            f"buffer_store_dword v10, off, {SRD_DBG}, 0 sc1",
            "s_mov_b64 exec, -1",
        ])
        p.label("L_nonce_done")
        p.salu("s_mul_i32", S_R, S_N, "147")
        p.salu("s_lshr_b32", S_R, S_R, "10")
        p.salu("s_mul_i32", S_C, S_R, "7")
        p.salu("s_sub_u32", S_C, S_N, S_C)
        if self.o.get("samet"):
            p.salu("s_and_b32", S_R, S_R, str(self.o.get("samer", 0)))
            p.salu("s_and_b32", S_C, S_C, str(self.o.get("samec", 0)))
        p.salu("s_lshl_b32", "s4", S_BR, "6")
        p.salu("s_add_u32", "s4", "s4", S_H)
        p.salu("s_mul_i32", "s4", "s4", "144")
        p.salu("s_mul_i32", "s5", S_B, "9")
        p.salu("s_add_u32", "s4", "s4", "s5")
        p.salu("s_lshl_b32", S_OFB, "s4", "10")
        p.salu("s_lshl_b32", "s4", S_BR, "3")
        p.salu("s_add_u32", "s4", "s4", S_B)
        p.salu("s_lshl_b32", "s4", "s4", "9")
        p.salu("s_lshl_b32", "s5", S_H, "2")
        p.salu("s_add_u32", "s4", "s4", "s5")
        p.salu("s_add_u32", S_FLG, "s4", str(FL_BASE))
        r, cc, Gq, hh = "v40", "v41", "v42", "v43"
        p.valu("v_bfe_u32", r, lane, "2", "2")
        p.valu("v_and_b32", cc, "3", lane)
        p.valu("v_lshrrev_b32", Gq, "4", lane)
        p.valu("v_lshrrev_b32", hh, "5", lane)
        A = self.VWA
        p.valu("v_lshlrev_b32", V_T0, "3", Gq)
        p.valu("v_add_u32", V_T0, V_T0, r)
        p.valu("v_lshlrev_b32", V_T0, "9", V_T0)
        p.valu("v_lshl_add_u32", V_T0, cc, "3", V_T0)
        p.valu("v_and_b32", V_T1, "1", Gq)
        p.valu("v_lshl_add_u32", "v44", r, "1", V_T1)
        for t in range(8):
            p.valu("v_xor_b32", V_T1, str(t), "v44")
            p.valu("v_lshl_add_u32", f"v{A + t}", V_T1, "5", V_T0)
        p.salu("s_lshr_b32", "s4", S_W, "1")
        p.salu("s_lshl_b32", "s4", "s4", "8")
        p.valu("v_add_u32", V_T0, "s4", V_T0)
        p.salu("s_and_b32", "s4", S_W, "1")
        p.salu("s_lshl_b32", "s4", "s4", "2")
        p.valu("v_xor_b32", "v44", "s4", "v44")
        for tt in range(4):
            p.valu("v_xor_b32", V_T1, str(tt), "v44")
            p.valu("v_lshl_add_u32", f"v{A + 8 + tt}", V_T1, "5", V_T0)
        q = "v45"
        p.valu("v_and_b32", q, "15", lane)
        p.valu("v_lshlrev_b32", V_T0, "7", q)
        p.valu("v_lshrrev_b32", V_T1, "1", q)
        p.valu("v_xor_b32", V_T1, V_T1, Gq)
        p.salu("s_lshl_b32", "s4", S_W, "12")
        p.salu("s_add_u32", "s4", "s4", str(XB))
        for ks in range(2):
            p.valu("v_xor_b32", "v46", str(4 * ks), V_T1)
            p.valu("v_lshl_add_u32", "v46", "v46", "4", V_T0)
            p.valu("v_add_u32", f"v{A + 12 + ks}", "s4", "v46")
            p.valu("v_add_u32", f"v{A + 14 + ks}", str(XB + 128 * 128), "v46")
        p.valu("v_and_b32", V_T0, "31", lane)
        p.valu("v_xor_b32", V_T0, V_T0, hh)
        p.valu("v_lshlrev_b32", V_T1, "9", hh)
        p.valu("v_lshl_add_u32", V_DK, V_T0, "4", V_T1)
        p.valu("v_lshrrev_b32", V_T0, "3", lane)
        p.valu("v_and_b32", V_T1, "6", V_T0)
        p.valu("v_and_b32", "v46", "7", lane)
        p.valu("v_xor_b32", V_T1, V_T1, "v46")
        p.valu("v_lshlrev_b32", V_T0, "9", V_T0)
        p.valu("v_lshl_add_u32", V_DV, V_T1, "4", V_T0)
        p.valu("v_and_b32", q, "15", lane)
        p.valu("v_lshrrev_b32", V_T0, "1", q)
        p.valu("v_mul_u32_u24", V_T0, str(BLK), V_T0)
        p.valu("v_and_b32", V_T1, "1", q)
        p.valu("v_xor_b32", "v46", V_T1, Gq)
        p.valu("v_lshl_add_u32", V_T0, V_T1, "9", V_T0)
        p.valu("v_lshl_add_u32", V_KA, "v46", "4", V_T0)
        p.valu("v_add_u32", V_KN, S_LW, V_KA)
        if self.o.get("prefetch_code", True):
            p.raw("s_getpc_b64 s[60:61]", "salu", expand("s[60:61]"), [])
            p.label("L_pc0")
            p.raw(f"s_sub_u32 s60, s60, L_pc0-{KNAME}", "salu", ["s60", "scc"], ["s60"])
            p.salu("s_subb_u32", "s61", "s61", "0")
            p.raw(f"s_mov_b32 s62, L_code_end-{KNAME}", "salu", ["s62"], [])
            p.salu("s_mov_b32", "s63", "0x20000")
            p.salu("s_lshr_b32", "s4", "s2", "3")
            p.salu("s_and_b32", "s4", "s4", "31")
            p.salu("s_lshl_b32", "s4", "s4", "2")
            p.salu("s_add_u32", "s4", "s4", S_W)
            p.salu("s_lshl_b32", "s4", "s4", "10")
            p.buf_load(4, "a[252:255]", V_L16, SRD_CODE, "s4")

    def run_pipeline(self, frags, nbuf, buf0, dist, fillers, pre_reads=None):
        nf = len(frags)
        sk = self.o.get("skel", 0) if self.in_stream else 0
        if sk:
            if sk in (1, 2, 3):
                frags = [((lambda b: None), f[1] if sk < 3 else (lambda b: None), f[2]) for f in frags]
            if sk in (2, 3, 4):
                fillers = [f for f in fillers if getattr(f[1], "is_dma", False)]

        def breg(i):
            return buf0 + 4 * (i % nbuf)
        if pre_reads:
            pre_reads()
        for i in range(min(dist, nf)):
            frags[i][0](breg(i))
        fl = sorted(fillers, key=lambda x: x[0])
        t = 0
        k = 0
        for i in range(nf):
            frags[i][1](breg(i))
            t += frags[i][2]
            if i + dist < nf:
                frags[i + dist][0](breg(i + dist))
            while k < len(fl) and fl[k][0] <= t:
                fl[k][1]()
                k += 1
        while k < len(fl):
            fl[k][1]()
            k += 1
        return t

    def run_phase(self, stages, nbuf, buf0, dist, lead):
        G_ = []
        first = []
        for si, st in enumerate(stages):
            first.append(len(G_))
            for f in st["frags"]:
                G_.append((si, f))
        n = len(G_)
        sk = self.o.get("skel", 0) if self.in_stream else 0
        bpos = [max(0, f0 - lead) if si > 0 else 0 for si, f0 in enumerate(first)]
        done = -1
        rp = 0
        fl = []
        t = 0

        def breg(i):
            return buf0 + 4 * (i % nbuf)

        def reads(i, maxn):
            nonlocal rp
            k = 0
            while rp < n and rp <= i + dist and G_[rp][0] <= done and k < maxn:
                if sk not in (1, 2, 3):
                    G_[rp][1][0](breg(rp))
                rp += 1
                k += 1
        for i in range(n):
            si, f = G_[i]
            while done + 1 < len(stages) and bpos[done + 1] <= i:
                for e in fl:
                    e[1]()
                done += 1
                stages[done]["boundary"]()
                fl = sorted(stages[done]["fillers"](), key=lambda x: x[0])
                if sk in (2, 3, 4):
                    fl = [e for e in fl if getattr(e[1], "is_dma", False)]
                t = 0
                reads(i, (lead + 2) if done > 0 else dist)
            if sk != 3:
                f[1](breg(i))
            t += f[2]
            reads(i + 1, 2)
            while fl and fl[0][0] <= t:
                fl.pop(0)[1]()
            if i + 1 == n or G_[i + 1][0] != si:
                if stages[si].get("after"):
                    stages[si]["after"]()
        for e in fl:
            e[1]()

    @staticmethod
    def merge(a, b):
        out = []
        ia = ib = 0
        while ia < len(a) or ib < len(b):
            if ib >= len(b) or (ia < len(a) and ia * max(len(b), 1) <= ib * max(len(a), 1)):
                out.append(a[ia]); ia += 1
            else:
                out.append(b[ib]); ib += 1
        return out

    @staticmethod
    def spread(groups, t0, t1):
        n = len(groups)
        return [(t0 + (t1 - t0) * i // max(n, 1), g) for i, g in enumerate(groups)]

    def addr_window(self, regs, n, first):
        p = self.p
        sl = self.slot_of(n)
        prev = 0 if first else self.slot_of(n - 1)
        d = (sl - prev) * SLOT
        if d:
            for r in regs:
                if d > 0:
                    p.valu("v_add_u32", r, str(d), r)
                else:
                    p.valu("v_subrev_u32", r, str(-d), r)

    QACC = {"A": 44, "B": 108, "N": 172}
    QF = {"A": 0, "B": 32, "N": 64}

    def phase0(self):
        p = self.p
        FB = 188
        A = self.VWA
        stages = []
        for n in range(7):
            XF = {"A": 96 + 24 * (n & 1), "B": 104 + 24 * (n & 1), "N": 112 + 24 * (n & 1)}
            xb = (n % 3) * XBUF

            def boundary(n=n, XF=XF, xb=xb):
                self.addr_window([f"v{A + k}" for k in range(12)], n, n == 0)
                self.stage_start(n, lgkm=True)
                if n == 0:
                    self.stamp(1)
                    self.stamp(141, cyc=True)
                for ks in range(2):
                    p.ds_read("ds_read_b128", R("a", XF["A"] + 4 * ks, 4), f"v{A + 12 + ks}", xb)
                    p.ds_read("ds_read_b128", R("a", XF["B"] + 4 * ks, 4), f"v{A + 12 + ks}", xb + 2048)
                    if ks == 0 or n == 6:
                        pass
                    p.ds_read("ds_read_b128", R("a", XF["N"] + 4 * ks, 4), f"v{A + 14 + ks}", xb)

            def mk_main(ks, t, n=n, XF=XF):
                def rd(b):
                    for h in range(2):
                        p.ds_read("ds_read_b64_tr_b16", R("v", b + 2 * h, 2), f"v{A + (t & 7)}",
                                  (t >> 3) * 256 + h * 2048 + ks * 16384)

                def mf(b):
                    for X in ("A", "B"):
                        acc = R("v", self.QACC[X] + 4 * t, 4)
                        p.mfma(acc, R("v", b, 4), R("a", XF[X] + 4 * ks, 4), "0" if (n == 0 and ks == 0) else acc)
                return (rd, mf, 32)

            def mk_ninth(ks, tt, n=n, XF=XF):
                def rd(b):
                    for h in range(2):
                        p.ds_read("ds_read_b64_tr_b16", R("v", b + 2 * h, 2), f"v{A + 8 + tt}", h * 2048 + ks * 16384)

                def mf(b):
                    acc = R("v", self.QACC["N"] + 4 * tt, 4)
                    p.mfma(acc, R("v", b, 4), R("a", XF["N"] + 4 * ks, 4), "0" if (n == 0 and ks == 0) else acc)
                return (rd, mf, 16)
            frags = []
            extra = []
            if n < 6:
                for ks in range(2):
                    for t in range(16):
                        frags.append(mk_main(ks, t))
                        if t % 4 == 3:
                            frags.append(mk_ninth(ks, t // 4))
            else:
                for ks in range(2):
                    for tt in range(4):
                        frags.append(mk_ninth(ks, tt))
                for t in range(16):
                    for ks in range(2):
                        frags.append(mk_main(ks, t))
                L0 = 32 * self.o.get("l0", 4)
                extra.append((L0 + 128 + 64, self.q_final_ninth))
                for s2 in range(8):
                    t = L0 + 128 + 128 * (s2 + 1) + 64
                    extra.append((t, lambda s2=s2: self.q_final("A", s2)))
                    extra.append((t + 64, lambda s2=s2: self.q_final("B", s2)))
            stages.append(dict(frags=frags, boundary=boundary,
                               fillers=(lambda n=n, extra=extra: self.body_fillers(n, [], 32, 1100) + extra)))
        self.run_phase(stages, 15, FB, self.o.get("d0", 8), self.o.get("l0", 4))

    def q_pack(self, b):
        p = self.p
        for k in range(8):
            p.valu("v_mul_f32", f"v{b + k}", "s52", f"v{b + k}")
        for k in range(4):
            p.valu("v_cvt_pk_bf16_f32", f"v{b + k}", f"v{b + 2 * k}", f"v{b + 2 * k + 1}")
        p.valu("v_permlane32_swap_b32", f"v{b}", f"v{b + 2}")
        p.valu("v_permlane32_swap_b32", f"v{b + 1}", f"v{b + 3}")
        p.valu("v_permlane16_swap_b32", f"v{b}", f"v{b + 2}")
        p.valu("v_permlane16_swap_b32", f"v{b + 1}", f"v{b + 3}")

    def q_final(self, X, s):
        p = self.p
        b = self.QACC[X] + 8 * s
        self.q_pack(b)
        for k in range(4):
            p.valu("v_accvgpr_write_b32", f"a{self.QF[X] + 4 * s + k}", f"v{b + k}")

    def q_final_ninth(self):
        p = self.p
        for s in range(2):
            b = self.QACC["N"] + 8 * s
            self.q_pack(b)
            if s == 0:
                p.salu("s_lshl_b32", "s4", S_W, "11")
                p.salu("s_add_u32", "s4", "s4", str(M_QN))
                p.valu("v_add_u32", V_T0, "s4", V_L16)
            p.ds_write("ds_write_b128", V_T0, R("v", b, 4), s * 1024)

    def phase0_end(self):
        if self.o.get("dump") == "q":
            self.dump_regs([f"a{i}" for i in range(64)])

    def dump_regs(self, rl):
        p = self.p
        p.wait_vm_all()
        p.valu("v_lshlrev_b32", "v10", "2", V_TID)
        p.salu("s_lshl_b32", "s4", "s2", "2")
        p.salu("s_add_u32", "s4", "s4", S_W)
        p.salu("s_mul_i32", "s4", "s4", str(512 * 256))
        p.salu("s_add_u32", "s4", "s4", str(DUMP_BASE + 262144))
        p.salu("s_mov_b32", "s30", "285179904")
        for r in rl:
            if r[0] == "a":
                p.valu("v_accvgpr_read_b32", "v11", r)
                src = "v11"
            else:
                src = r
            p.buf_store(1, src, "v10", SRD_WS, "s4")
            p.salu("s_add_u32", "s4", "s4", "256")
            p.wait_vm_all()

    def site(self, X, par):
        p = self.p
        i = self.nsite
        self.nsite += 1
        if self.o.get("skel"):
            return
        defs = [f"v{ACC[X][0]+k}" for k in range(4)] + [f"v{ACC[X][1]+k}" for k in range(4)]
        defs += [f"v{NM[X]+k}" for k in range(4)] + [f"a{A_L[X]+k}" for k in range(4)]
        defs += [V_M, V_T0, V_T1, "v10"]
        for kt in range(64 if X != "N" else 16):
            t_, r_ = self.preg(X, kt)
            defs += [f"{t_}{r_}", f"{t_}{r_+1}"]
        p.site(f"L_rs{i}", f"L_rr{i}", defs)
        self.stubs.append((i, f"{X}{par}"))

    def store_p(self, loc, k, a0, a1):
        p = self.p
        if loc[0] == "v":
            p.valu("v_cvt_pk_bf16_f32", f"v{loc[1] + k}", a0, a1)
        else:
            t = "v10" if k & 1 else "v11"
            p.valu("v_cvt_pk_bf16_f32", t, a0, a1)
            p.valu("v_accvgpr_write_b32", f"a{loc[1] + k}", t)

    def colmax4(self, m, t):
        p = self.p
        p.valu("v_mov_b32", t, m)
        p.valu("v_permlane32_swap_b32", m, t)
        p.valu("v_max_f32", m, m, t)
        p.valu("v_mov_b32", t, m)
        p.valu("v_permlane16_swap_b32", m, t)
        p.valu("v_max_f32", m, m, t)

    def l_add(self, X, kt0):
        if self.o.get("nol") and kt0 > 0:
            return
        acc = R("a", A_L[X], 4)
        self.p.mfma(acc, R("a", A_ONE, 4), self.pfrag(X, kt0), "0" if kt0 == 0 else acc)

    def post_block(self, X, kt, first, t0):
        p = self.p
        par = (kt & 1) if X != "N" else 0
        a = ACC[X][par]
        nm = NM[X]
        loc = self.preg(X, kt)
        m = V_M if X != "B" else V_T1
        ev = []
        if first:
            def init():
                p.valu("v_max3_f32", V_M, f"v{a}", f"v{a+1}", f"v{a+2}")
                p.valu("v_max_f32", V_M, V_M, f"v{a+3}")
                self.colmax4(V_M, V_T0)
                p.valu("v_ceil_f32", V_M, V_M)
                for k in range(4):
                    p.valu("v_sub_f32", f"v{nm+k}", "0", V_M)
                for k in range(4):
                    p.valu("v_sub_f32", f"v{a+k}", f"v{a+k}", V_M)
            ev.append((t0 + 48, init))
        else:
            ev.append((t0 + 48, lambda: p.valu("v_max3_f32", m, f"v{a}", f"v{a+1}", f"v{a+2}")))
            ev.append((t0 + 64, lambda: p.valu("v_max_f32", m, m, f"v{a+3}")))
            ev.append((t0 + 96, lambda: p.vcmp("v_cmp_lt_f32", "vcc", S_T, m)))
            ev.append((t0 + 150, lambda: self.site(X, par)))
        for k in range(4):
            ev.append((t0 + 160 + 16 * k, lambda k=k: p.valu("v_exp_f32", f"v{a+k}", f"v{a+k}")))
        ev.append((t0 + 224, lambda: self.store_p(loc, 0, f"v{a}", f"v{a+1}")))
        ev.append((t0 + 240, lambda: self.store_p(loc, 1, f"v{a+2}", f"v{a+3}")))
        if kt & 1:
            ev.append((t0 + 288, lambda: self.l_add(X, kt - 1)))
        return ev

    def phase1(self):
        p = self.p
        F0, G0 = 96, 128
        sk = self.o.get("skel", 0)
        noreads = sk in (1, 2, 3)
        nopost = sk in (2, 3, 4) or self.o.get("nopost")

        def kread(dst, kt, s):
            if not noreads:
                p.ds_read("ds_read_b128", R("a", dst, 4), V_KA, kt * 8 * BLK + 64 * s)

        def nread(dst, s):
            if not noreads:
                p.ds_read("ds_read_b128", R("a", dst, 4), V_KN, 64 * s)

        def boundary(st):
            n = 7 + st
            toks = []
            if st == 0:
                d = self.slot_of(n) * SLOT
                if d:
                    p.valu("v_add_u32", V_KA, str(d), V_KA)
                    p.valu("v_add_u32", V_KN, str(d), V_KN)
            else:
                self.addr_window([V_KA, V_KN], n, False)
            self.stage_start(n, lgkm=True, toks=toks)
            if st in (0, 8):
                self.stamp(2 if st == 0 else 3)
                self.stamp(142 if st == 0 else 143, cyc=True)
            ev = self.body_fillers(n, self.phase1_extras(st), 16, 1100)
            if sk in (2, 3, 4):
                ev = [e for e in ev if getattr(e[1], "is_dma", False)]
            return ev
        body = boundary(0)
        for s in range(8):
            kread(F0 + 4 * s, 0, s)
        p.valu("v_add_u32", V_T1, str(M_QN), V_L16)
        for s in range(8):
            p.ds_read("ds_read_b128", R("a", self.QF["N"] + 4 * s, 4), V_T1, s * 1024)
        p.valu("v_mov_b32", V_T1, "0x3f803f80")
        for k in range(4):
            p.valu("v_accvgpr_write_b32", f"a{A_ONE+k}", V_T1)
        post = []
        t = 0
        tb = 0
        blocks = [("A", 0), ("B", 0), ("A", 1), ("B", 1), ("N", 0), ("A", 2), ("B", 2), ("A", 3), ("B", 3)]
        for st in range(16):
            for bi, (X, kt) in enumerate(blocks):
                if bi == 8 and st < 15:
                    for e in body:
                        e[1]()
                    body = boundary(st + 1)
                    tb = t
                gkt = 4 * st + kt if X != "N" else st
                first = (st == 0 and kt == 0)
                acc = R("v", ACC[X][(gkt & 1) if X != "N" else 0], 4)
                for s in range(8):
                    src = G0 + 4 * s if X == "N" else F0 + 4 * s
                    c = acc if s > 0 else ("0" if first else R("v", NM[X], 4))
                    if sk != 3:
                        p.mfma(acc, R("a", src, 4), R("a", self.QF[X] + 4 * s, 4), c)
                    t += 16
                    if X == "B" and kt < 3:
                        kread(F0 + 4 * s, kt + 1, s)
                    if X == "B" and kt == 3 and st < 15:
                        kread(F0 + 4 * s, 0, s)
                    if X == "A" and kt == 1 and not (self.o.get("nonrd") and st > 0):
                        nread(G0 + 4 * s, s)
                    while body and body[0][0] <= t - tb:
                        body.pop(0)[1]()
                    post.sort(key=lambda e: e[0])
                    while post and post[0][0] <= t:
                        post.pop(0)[1]()
                if not nopost:
                    post += self.post_block(X, gkt, first, t)
        for e in body:
            e[1]()
        p.nop(7)
        for e in sorted(post, key=lambda e: e[0]):
            e[1]()

    def phase1_extras(self, st):
        p = self.p
        ex = []
        if self.o.get("noex"):
            self.wo_tok = self.rp_tok = -1
            return ex
        if st == 6 and self.o.get("tlbw", 0):
            def tw():
                p.salu("s_mov_b32", S_TMP, str(144 * 1024))
                p.valu("v_mul_lo_u32", "v10", V_TID, S_TMP)
                p.salu("s_mul_i32", S_TMP, S_BR, str(9216 * 1024))
                p.buf_load(1, "a176", "v10", SRD_WS, S_TMP)
                p.valu("v_lshlrev_b32", "v11", "15", V_TID)
                p.buf_load(1, "a177", "v11", SRD_OUT, "0")
                p.buf_load(1, "a178", None, SRD_WS, S_FLG)
                p.buf_load(1, "a179", None, SRD_V, "0", flags="nt")
            ex.append(tw)
        if st == 2:
            ex.append(lambda: p.buf_load(1, V_CHK, None, SRD_DBG, "0", flags="sc1"))
        if st == 4 and not self.o.get("skel"):
            def chk():
                p.valu("v_readfirstlane_b32", S_NON, V_CHK)
                p.salu("s_cmp_lg_u32", S_NON, "0")
                p.branch("s_cbranch_scc1", "L_non_ok")
                p.opaque([
                    f"s_mov_b32 {S_SPIN}, 0",
                    "L_non_spin:",
                    "s_sleep 8",
                    f"buffer_load_dword v9, off, {SRD_DBG}, 0 sc1",
                    "s_waitcnt vmcnt(0)",
                    f"v_readfirstlane_b32 {S_NON}, v9",
                    f"s_add_u32 {S_SPIN}, {S_SPIN}, 1",
                    f"s_cmp_gt_u32 {S_SPIN}, 100000",
                    "s_cbranch_scc1 L_non_ok",
                    f"s_cmp_eq_u32 {S_NON}, 0",
                    "s_cbranch_scc1 L_non_spin",
                ])
                p.label("L_non_ok")
            ex.append(chk)
        return ex

    def late_jobs(self, n):
        p = self.p
        jobs = []
        st = n - 7

        if self.o.get("nost") and n >= 23:
            self.otok = -1
            return jobs
        ww = self.o.get("wowarm", 2)
        wst = {1: {24: range(0, 4), 25: range(4, 7)}, 2: {k: [k] for k in range(7)}, 3: {8 + k: [k] for k in range(7)}}.get(ww, {})
        if n in wst:
            for m in wst[n]:
                def g(m=m):
                    p.salu("s_lshl_b32", S_TMP, S_H, "8")
                    p.salu("s_lshl_b32", S_OFF, S_B, "5")
                    p.salu("s_add_u32", S_TMP, S_TMP, S_OFF)
                    p.salu("s_mul_i32", S_TMP, S_TMP, "896")
                    p.salu("s_mul_i32", S_OFF, S_W, str(7 * 1024))
                    p.salu("s_add_u32", S_TMP, S_TMP, S_OFF)
                    p.salu("s_add_u32", S_OFF, S_TMP, str(m * 1024))
                    reg = 152 + 4 * (m & 3) if n >= 23 else (148 + 4 * (m & 1) if n < 7 else 176 + 4 * (m & 1))
                    p.buf_load(4, R("a", reg, 4), V_L16, SRD_WO, S_OFF)
                jobs.append(g)
        if n >= 28 and (n - 23) % 4 == 1:
            j = (n - 23) // 4 - 1
            jobs.append(lambda j=j: self.ninth_finish(j))
        if n == 37:
            self.ojobs = []
            for j in range(3):
                self.ojobs += self.o_store_jobs(j)
            k = self.o.get("o37", 7)
            jobs += self.ojobs[:k]
        if n == 38:
            k = self.o.get("o37", 7)
            tj = self.tail_setup_jobs()
            jobs += tj[:1] + self.merge(self.ojobs[k:], tj[1:])
        return jobs

    def flag_store(self, soff, tag):
        p = self.p
        lbl = f"L_fl_{tag}"
        p.opaque([
            f"s_cmp_lg_u32 {S_W}, 0",
            f"s_cbranch_scc1 {lbl}",
            f"v_mov_b32 v10, {S_NON}",
            "s_mov_b64 exec, 1",
            f"buffer_store_dword v10, off, {SRD_WS}, {soff} sc1",
            "s_mov_b64 exec, -1",
        ], uses=expand(soff))
        p.label(lbl)

    def code_pf(self, n):
        p = self.p
        ahead = self.o.get("pfa", 2)
        tgt = n + ahead
        lbl = f"L_stage{tgt}" if tgt <= 38 else ("L_tail" if tgt == 39 else None)
        if lbl is None or not self.o.get("rollpf", 0):
            return []
        jobs = []
        reps = 2 if (tgt in (6, 22, 39)) else 1
        for r in range(reps):
            def g(r=r):
                p.salu("s_lshl_b32", S_TMP, S_W, "10")
                p.raw(f"s_add_u32 {S_TMP}, {S_TMP}, {lbl}-{KNAME}+{4096 * r}", "salu", [S_TMP, "scc"], [S_TMP])
                p.buf_load(4, self.pf_reg(n), V_L16, SRD_CODE, S_TMP)
            jobs.append(g)
        return jobs

    def pf_reg(self, n):
        if n < 7:
            return "a[148:151]" if n & 1 else "a[152:155]"
        if n < 23:
            return "a[176:179]" if n & 1 else "a[180:183]"
        return "a[104:107]" if n & 1 else "a[108:111]"

    def body_fillers(self, n, extras, t0, t1):
        d = self.dma_until(n + 1)
        nlast = sum(1 for f in d if f.stage == n + 1)
        late = self.late_jobs(n) + self.code_pf(n)
        seq = d[:nlast] + late + self.merge(d[nlast:], extras)
        return self.spread(seq, t0, t1)
        return ex

    V_RLA, V_RLB, V_FN = "v4", "v5", "v6"
    VA0 = 32

    def lphase(self):
        p = self.p
        p.valu("v_mov_b32", "v10", f"v{NM['N']}")
        self.v_read_addr()
        p.valu("v_lshrrev_b32", V_T0, "1", V_L16)
        p.salu("s_lshl_b32", "s4", S_W, "9")
        p.salu("s_add_u32", "s4", "s4", str(M_ST))
        p.valu("v_add_u32", V_T1, "s4", V_T0)
        p.valu("v_accvgpr_read_b32", "v11", f"a{A_L['N']}")
        p.ds_write("ds_write_b64", V_T1, "v[10:11]")
        p.valu("v_mov_b32", V_CHK, "v10")
        p.valu("v_accvgpr_read_b32", V_T0, f"a{A_L['A']}")
        p.valu("v_accvgpr_read_b32", V_T1, f"a{A_L['B']}")
        p.valu("v_rcp_f32", self.V_RLA, V_T0)
        p.valu("v_rcp_f32", self.V_RLB, V_T1)

    def ninth_stats(self):
        p = self.p
        p.valu("v_lshrrev_b32", V_T0, "1", V_L16)
        p.valu("v_add_u32", V_T0, str(M_ST), V_T0)
        t = 12
        for w in range(4):
            p.ds_read("ds_read_b64", R("v", t + 2 * w, 2), V_T0, w * 512)
        p.valu("v_min_f32", V_T1, f"v{t}", f"v{t+2}")
        p.valu("v_min3_f32", V_T1, V_T1, f"v{t+4}", f"v{t+6}")
        for w in range(4):
            p.valu("v_sub_f32", f"v{t+2*w}", V_T1, f"v{t+2*w}")
            p.valu("v_cvt_i32_f32", f"v{t+2*w}", f"v{t+2*w}")
            p.valu("v_ldexp_f32", f"v{t+2*w+1}", f"v{t+2*w+1}", f"v{t+2*w}")
        p.valu("v_add_f32", f"v{t+1}", f"v{t+1}", f"v{t+3}")
        p.valu("v_add_f32", f"v{t+5}", f"v{t+5}", f"v{t+7}")
        p.valu("v_add_f32", f"v{t+1}", f"v{t+1}", f"v{t+5}")
        p.valu("v_rcp_f32", f"v{t+1}", f"v{t+1}")
        p.valu("v_sub_f32", V_T1, V_T1, V_CHK)
        p.valu("v_cvt_i32_f32", V_T1, V_T1)
        p.valu("v_ldexp_f32", self.V_FN, f"v{t+1}", V_T1)

    def v_read_addr(self):
        p = self.p
        lane = V_TID
        g, r, cc, k8 = "v12", "v13", "v14", "v15"
        base = self.slot_of(23) * SLOT
        p.valu("v_lshrrev_b32", g, "4", lane)
        p.valu("v_bfe_u32", r, lane, "2", "2")
        p.valu("v_and_b32", cc, "3", lane)
        p.valu("v_and_b32", k8, "1", g)
        p.valu("v_lshl_add_u32", k8, k8, "2", r)
        p.valu("v_lshrrev_b32", V_T0, "1", g)
        p.valu("v_mul_u32_u24", V_T0, str(BLK), V_T0)
        p.valu("v_lshl_add_u32", V_T0, k8, "7", V_T0)
        p.valu("v_lshl_add_u32", V_T0, cc, "3", V_T0)
        p.valu("v_add_u32", V_T0, str(base), V_T0)
        p.valu("v_lshrrev_b32", k8, "1", k8)
        p.salu("s_mul_i32", "s4", S_W, str(2 * BLK))
        for t in range(4):
            p.valu("v_xor_b32", V_T1, str(t), k8)
            p.valu("v_lshl_add_u32", f"v{self.VA0 + t}", V_T1, "5", V_T0)
            p.valu("v_add_u32", f"v{self.VA0 + 4 + t}", "s4", f"v{self.VA0 + t}")

    OACC = {"A": 0, "B": 16, "N": 32}

    def phase2(self):
        p = self.p
        FB = 48
        stages = []
        for j in range(4):
            for sv in range(4):
                n = 23 + 4 * j + sv

                def boundary(n=n, j=j, sv=sv):
                    toks = []
                    if n > 23:
                        self.addr_window([f"v{self.VA0 + k}" for k in range(8)], n, False)
                    self.stage_start(n, lgkm=True, toks=toks)
                    if sv == 0:
                        self.stamp(4 + j)
                        self.stamp(144 + j, cyc=True)
                    if n == 23:
                        self.ninth_stats()

                def fillers(n=n, j=j, sv=sv):
                    ev = self.body_fillers(n, [], 32, 1100)
                    return ev
                frags = []
                for ks in range(8):
                    for t in range(4):
                        def rd(b, ks=ks, t=t):
                            for h in range(2):
                                p.ds_read("ds_read_b64_tr_b16", R("a", b + 2 * h, 2), f"v{self.VA0 + t}", (4 * ks + 2 * h) * BLK)

                        def mf(b, ks=ks, t=t, sv=sv):
                            for X in ("A", "B"):
                                acc = R("a", self.OACC[X] + 4 * t, 4)
                                p.mfma(acc, R("a", b, 4), self.pfrag(X, 16 * sv + 2 * ks), "0" if (sv == 0 and ks == 0) else acc)
                        frags.append((rd, mf, 32))
                    if ks % 2 == 1:
                        mk = ks // 4
                        for t in ((0, 1) if ks % 4 == 1 else (2, 3)):
                            def rdn(b, mk=mk, t=t):
                                if self.o.get("nonrd"):
                                    return
                                for h in range(2):
                                    p.ds_read("ds_read_b64_tr_b16", R("a", b + 2 * h, 2), f"v{self.VA0 + 4 + t}",
                                              (16 * mk + 8 * h) * BLK)

                            def mfn(b, mk=mk, t=t, sv=sv):
                                acc = R("a", self.OACC["N"] + 4 * t, 4)
                                p.mfma(acc, R("a", b, 4), self.pfrag("N", 4 * sv + 2 * mk), "0" if (sv == 0 and mk == 0) else acc)
                            frags.append((rdn, mfn, 16))
                stages.append(dict(frags=frags, boundary=boundary, fillers=fillers,
                                   after=((lambda j=j: self.finalize(j)) if sv == 3 else None)))
        self.run_phase(stages, 10, FB, self.o.get("d2", 7), self.o.get("l2", 4))
        p.wait_vm(self.otok)
        p.wait_lgkm_all()
        p.barrier()
        self.signal(0)
        self.ninth_finish(3)
        for g in self.o_store_jobs(3):
            g()

    A_OP = 104

    def opk(self, j, i):
        return self.A_OP + 20 * j + 4 * i

    def opn(self, j):
        return self.A_OP + 20 * j + 16

    def finalize(self, j):
        p = self.p
        i = 0
        for X, rl in (("A", self.V_RLA), ("B", self.V_RLB)):
            for s2 in range(2):
                d = self.opk(j, i)
                i += 1
                for k2 in range(2):
                    a0 = self.OACC[X] + 8 * s2 + 4 * k2
                    t = 12 + 6 * (k2 & 1)
                    for k in range(4):
                        p.valu("v_accvgpr_read_b32", f"v{t+k}", f"a{a0+k}")
                    for k in range(4):
                        p.valu("v_mul_f32", f"v{t+k}", f"v{t+k}", rl)
                    p.valu("v_cvt_pk_bf16_f32", f"v{t+4}", f"v{t}", f"v{t+1}")
                    p.valu("v_cvt_pk_bf16_f32", f"v{t+5}", f"v{t+2}", f"v{t+3}")
                    p.valu("v_accvgpr_write_b32", f"a{d+2*k2}", f"v{t+4}")
                    p.valu("v_accvgpr_write_b32", f"a{d+2*k2+1}", f"v{t+5}")
        p.salu("s_lshl_b32", "s4", S_W, "12")
        p.salu("s_add_u32", "s4", "s4", str(M_NP))
        p.valu("v_add_u32", V_T0, "s4", V_L16)
        for tp in range(4):
            t = 24 + 4 * (tp & 1)
            for k in range(4):
                p.valu("v_accvgpr_read_b32", f"v{t+k}", f"a{self.OACC['N'] + 4 * tp + k}")
            for k in range(4):
                p.valu("v_mul_f32", f"v{t+k}", f"v{t+k}", self.V_FN)
            p.ds_write("ds_write_b128", V_T0, R("v", t, 4), tp * 1024)

    def ninth_finish(self, j):
        p = self.p
        p.salu("s_lshl_b32", "s4", S_W, "10")
        p.salu("s_add_u32", "s4", "s4", str(M_NP))
        p.valu("v_add_u32", V_T0, "s4", V_L16)
        for w in range(4):
            p.ds_read("ds_read_b128", R("v", 12 + 4 * w, 4), V_T0, w * 4096)
        for k in range(4):
            p.valu("v_add_f32", f"v{12+k}", f"v{12+k}", f"v{16+k}")
            p.valu("v_add_f32", f"v{20+k}", f"v{20+k}", f"v{24+k}")
        for k in range(4):
            p.valu("v_add_f32", f"v{12+k}", f"v{12+k}", f"v{20+k}")
        p.valu("v_cvt_pk_bf16_f32", "v16", "v12", "v13")
        p.valu("v_cvt_pk_bf16_f32", "v17", "v14", "v15")
        p.valu("v_accvgpr_write_b32", f"a{self.opn(j)}", "v16")
        p.valu("v_accvgpr_write_b32", f"a{self.opn(j)+1}", "v17")

    def o_store_jobs(self, j):
        p = self.p
        if not hasattr(self, "otok") or j == 3:
            self.otok = p.newtok()
        tok = self.otok
        fl = self.o.get("ost", "sc1")
        jobs = []
        i = 0
        for xo in range(2):
            for s2 in range(2):
                def g(xo=xo, s2=s2, r=self.opk(j, i)):
                    p.salu("s_lshl_b32", S_TMP, S_W, "11")
                    p.salu("s_add_u32", S_TMP, S_TMP, S_OFB)
                    p.salu("s_add_u32", S_OFF, S_TMP, str((j * 16 * 144 + s2 * 72 + xo) * 1024))
                    p.buf_store(4, R("a", r, 4), V_L16, SRD_WS, S_OFF, flags=fl, tok=tok)
                jobs.append(g)
                i += 1

        def gn():
            p.salu("s_lshr_b32", S_TMP, S_W, "1")
            p.salu("s_mul_i32", S_TMP, S_TMP, str(72 * 1024))
            p.salu("s_and_b32", S_OFF, S_W, "1")
            p.salu("s_lshl_b32", S_OFF, S_OFF, "3")
            p.salu("s_add_u32", S_TMP, S_TMP, S_OFF)
            p.salu("s_add_u32", S_TMP, S_TMP, S_OFB)
            p.salu("s_add_u32", S_OFF, S_TMP, str((j * 16 * 144 + 8) * 1024))
            p.buf_store(2, R("a", self.opn(j), 2), V_L16, SRD_WS, S_OFF, flags=fl, tok=tok)
        jobs.append(gn)
        return jobs

    def signal(self, j):
        p = self.p
        p.salu("s_add_u32", S_TMP, S_FLG, str(j * 128))
        self.flag_store(S_TMP, f"o{j}")

    def poll(self, vreg, tag, mask="-1"):
        p = self.p
        p.opaque([
            f"s_mov_b32 {S_SPIN}, 0",
            f"s_mov_b64 exec, {mask}",
            f"L_poll{tag}:",
            f"buffer_load_dword v10, {vreg}, {SRD_WS}, 0 offen sc1",
            "s_waitcnt vmcnt(0)",
            f"v_cmp_ne_u32 vcc, {S_NON}, v10",
            f"s_add_u32 {S_SPIN}, {S_SPIN}, 1",
            f"s_cmp_gt_u32 {S_SPIN}, 100000",
            f"s_cbranch_scc1 L_pollend{tag}",
            f"s_cbranch_vccz L_pollend{tag}",
            "s_sleep 2",
            f"s_branch L_poll{tag}",
            f"L_pollend{tag}:",
            "s_mov_b64 exec, -1",
        ], uses=expand(vreg))

    def poll3(self, vreg):
        self.poll(vreg, "3")

    def flag_addr(self):
        p = self.p
        p.salu("s_lshl_b32", "s4", S_R, "2")
        p.salu("s_mul_i32", "s5", "s4", "57")
        p.salu("s_lshr_b32", "s5", "s5", "9")
        p.salu("s_add_u32", "s4", "s4", "3")
        p.salu("s_mul_i32", "s6", "s4", "57")
        p.salu("s_lshr_b32", "s6", "s6", "9")
        p.salu("s_lshl_b32", "s7", S_BR, "3")
        p.salu("s_add_u32", "s5", "s5", "s7")
        p.salu("s_add_u32", "s6", "s6", "s7")
        p.salu("s_lshl_b32", "s5", "s5", "9")
        p.salu("s_lshl_b32", "s6", "s6", "9")
        p.valu("v_mov_b32", V_T1, "s5")
        p.valu("v_mov_b32", "v10", "s6")
        p.vcmp("v_cmp_gt_u32", "vcc", "16", V_TID)
        p.valu("v_cndmask_b32", V_T1, "v10", V_T1, "vcc")
        p.valu("v_and_b32", V_T0, "15", V_TID)
        p.valu("v_lshl_add_u32", V_T0, V_T0, "2", V_T1)
        p.valu("v_add_u32", V_CHK, str(FL_BASE), V_T0)

    TVD, TVR = "v3", 40
    WSA, WSB = XB + 1024, 69632

    def wslot_lds(self, i):
        k = i % 4
        return (S_XL if k < 2 else S_WFD, (k & 1) * 4096)

    def tail_setup_jobs(self):
        p = self.p

        def setup():
            p.salu("s_mul_i32", "s4", S_BR, "9216")
            p.salu("s_mul_i32", "s5", S_W, str(4 * 144))
            p.salu("s_add_u32", "s4", "s4", "s5")
            p.salu("s_lshl_b32", "s5", S_R, "2")
            p.salu("s_add_u32", "s4", "s4", "s5")
            p.salu("s_lshl_b32", S_OFT, "s4", "10")
            p.salu("s_mul_i32", "s4", S_W, str(4 * 256 * 896))
            p.salu("s_lshl_b32", "s5", S_C, "7")
            p.salu("s_add_u32", S_WFT, "s4", "s5")
            p.salu("s_lshl_b32", "s4", S_W, "13")
            p.salu("s_add_u32", S_XL, "s4", str(self.WSA))
            p.salu("s_add_u32", S_WFD, "s4", str(self.WSB))
            lane = V_TID
            p.valu("v_lshrrev_b32", V_T0, "3", lane)
            p.valu("v_and_b32", V_T1, "6", V_T0)
            p.valu("v_and_b32", "v10", "7", lane)
            p.valu("v_xor_b32", V_T1, V_T1, "v10")
            p.valu("v_mul_u32_u24", V_T0, "896", V_T0)
            p.valu("v_lshl_add_u32", self.TVD, V_T1, "4", V_T0)
        jobs = [setup]
        self.wtok = {}
        for i in range(2):
            jobs.append(lambda i=i: self.w_dma(i))
        return jobs

    TSTEPS = [(j, hh, s2) for j in range(4) for hh in range(4) for s2 in range(2)]
    TWF = 224

    def w_dma(self, i):
        p = self.p
        j, hh, s2 = self.TSTEPS[i]
        self.wtok[i] = p.newtok()
        base, off = self.wslot_lds(i)
        for q in range(4):
            p.salu("s_add_u32", "m0", base, str(off + q * 1024))
            p.salu("s_add_u32", S_OFF, S_WFT, str((hh * 256 + 64 * j + 32 * s2 + 8 * q) * 896))
            ins = p.buf_dma(self.TVD, SRD_WO, S_OFF, tok=self.wtok[i])
            if i >= 4 and q == 0:
                ins.uses |= {f"a{self.TWF + 16 * ((i - 4) & 1) + k}" for k in range(16)}

    def tail(self):
        p = self.p
        o = self.o
        p.label("L_tail")
        if not self.o.get("skel"):
            self.stamp(8)
            self.stamp(148, cyc=True)
        p.salu("s_cmp_ge_u32", S_N, "126")
        p.branch("s_cbranch_scc0", "L_havetile")
        p.raw("s_waitcnt vmcnt(0)", "wait")
        p.barrier()
        p.opaque([f"s_add_u32 {S_TMP}, {S_FLG}, 128"])
        self.flag_store(S_TMP, "o1x")
        p.branch("s_branch", "L_fin")
        p.label("L_havetile")
        self.flag_addr()
        lane = V_TID
        g_, r_, cc_, k8 = "v16", "v17", "v18", "v19"
        p.valu("v_lshrrev_b32", g_, "4", lane)
        p.valu("v_bfe_u32", r_, lane, "2", "2")
        p.valu("v_and_b32", cc_, "3", lane)
        p.valu("v_and_b32", k8, "1", g_)
        p.valu("v_lshl_add_u32", k8, k8, "2", r_)
        p.valu("v_lshrrev_b32", V_T0, "1", g_)
        p.valu("v_lshlrev_b32", V_T0, "10", V_T0)
        p.valu("v_lshl_add_u32", V_T0, k8, "7", V_T0)
        p.valu("v_lshl_add_u32", V_T0, cc_, "3", V_T0)
        p.valu("v_lshrrev_b32", k8, "1", k8)
        for nt in range(4):
            p.valu("v_xor_b32", V_T1, str(nt), k8)
            p.valu("v_lshl_add_u32", V_T1, V_T1, "5", V_T0)
            p.valu("v_add_u32", f"v{40 + nt}", S_XL, V_T1)
            p.valu("v_add_u32", f"v{28 + nt}", S_WFD, V_T1)
        steps = self.TSTEPS
        NSO = 6
        WF = self.TWF
        AC = 44
        LA = 3

        def o_loads(i):
            j, hh, s2 = steps[i]
            b = 16 * (i % NSO)
            p.salu("s_add_u32", S_OFF, S_OFT, str((j * 16 * 144 + hh * 144 + s2 * 72) * 1024))
            for q in range(4):
                p.buf_load(4, R("a", b + 4 * q, 4), V_L16, SRD_WS, S_OFF, offset=q * 1024, flags="sc1")

        def w_reads(i):
            p.wait_vm(self.wtok[i])
            vr = 40 if (i % 4) < 2 else 28
            for nt in range(4):
                for h in range(2):
                    p.ds_read("ds_read_b64_tr_b16", R("a", WF + 16 * (i & 1) + 4 * nt + 2 * h, 2), f"v{vr + nt}",
                              (i & 1) * 4096 + h * 2048)
        self.poll3(V_CHK)
        self.stamp(13)
        for i in range(LA):
            o_loads(i)
        p.barrier()
        self.signal(1)
        self.w_dma(2)
        w_reads(0)
        for i in range(32):
            nx = i + LA
            if nx < 32:
                self.w_dma(nx)
                if nx == 24:
                    self.stamp(14)
                    p.valu("v_add_u32", V_CHK, "128", V_CHK)
                    self.poll(V_CHK, "b")
                    self.stamp(15)
                o_loads(nx)
            if i + 1 < 32:
                w_reads(i + 1)
            b = 16 * (i % NSO)
            for nt in range(4):
                for qt in range(4):
                    acc = R("v", AC + 16 * nt + 4 * qt, 4)
                    p.mfma(acc, R("a", WF + 16 * (i & 1) + 4 * nt, 4), R("a", b + 4 * qt, 4), "0" if i == 0 else acc)
        self.stamp(140)
        RS = 272
        p.valu("v_and_b32", V_T0, "15", V_TID)
        p.valu("v_mul_u32_u24", V_T0, str(RS), V_T0)
        p.valu("v_lshrrev_b32", V_T1, "4", V_TID)
        p.valu("v_lshl_add_u32", V_T0, V_T1, "4", V_T0)
        p.salu("s_mul_i32", "s4", S_W, str(64 * RS))
        p.valu("v_add_u32", V_T0, "s4", V_T0)
        for nt in range(4):
            for qt in range(4):
                p.ds_write("ds_write_b128", V_T0, R("v", AC + 16 * nt + 4 * qt, 4), qt * 16 * RS + nt * 64)
        p.wait_lgkm_all()
        p.barrier()
        p.salu("s_lshl_b32", "s4", S_W, "4")
        p.valu("v_lshrrev_b32", V_T0, "2", V_TID)
        p.valu("v_add_u32", V_T0, "s4", V_T0)
        p.valu("v_and_b32", V_T1, "3", V_TID)
        p.valu("v_mul_u32_u24", "v10", str(RS), V_T0)
        p.valu("v_lshl_add_u32", "v10", V_T1, "6", "v10")
        for w in range(4):
            for k in range(4):
                p.ds_read("ds_read_b128", R("v", 108 + 16 * w + 4 * k, 4), "v10", w * 64 * RS + 16 * k)
        p.salu("s_lshl_b32", "s4", S_R, "6")
        p.valu("v_add_u32", "v11", "s4", V_T0)
        p.salu("s_movk_i32", "s5", "1792")
        p.valu("v_mul_lo_u32", "v11", "v11", "s5")
        p.valu("v_lshl_add_u32", "v11", V_T1, "5", "v11")
        for k in range(16):
            p.valu("v_add_f32", f"v{108+k}", f"v{108+k}", f"v{124+k}")
            p.valu("v_add_f32", f"v{140+k}", f"v{140+k}", f"v{156+k}")
        for k in range(16):
            p.valu("v_add_f32", f"v{108+k}", f"v{108+k}", f"v{140+k}")
        for k in range(8):
            p.valu("v_cvt_pk_bf16_f32", f"v{172+k}", f"v{108+2*k}", f"v{109+2*k}")
        p.salu("s_mul_i32", "s4", S_BR, "896")
        p.salu("s_lshl_b32", "s5", S_C, "7")
        p.salu("s_add_u32", "s4", "s4", "s5")
        p.buf_store(4, "v[172:175]", "v11", SRD_OUT, "s4")
        p.buf_store(4, "v[176:179]", "v11", SRD_OUT, "s4", offset=16)
        self.stamp(9)
        self.stamp(11, cyc=True)

    def rescale(self, locs):
        p = self.p
        for (t, i) in locs:
            if t == "v":
                r = f"v{i}"
            else:
                r = "v10"
                p.valu("v_accvgpr_read_b32", r, f"a{i}")
            p.valu("v_and_b32", V_T1, "0xffff0000", r)
            p.valu("v_lshlrev_b32", V_T0, "16", r)
            p.valu("v_ldexp_f32", V_T1, V_T1, V_M)
            p.valu("v_ldexp_f32", V_T0, V_T0, V_M)
            p.valu("v_cvt_pk_bf16_f32", r, V_T0, V_T1)
            if t == "a":
                p.valu("v_accvgpr_write_b32", f"a{i}", r)

    def rare_routines(self):
        p = self.p
        for i, X in self.stubs:
            p.label(f"L_rs{i}")
            p.raw(f"s_call_b64 {S_RET}, L_rare{X}", "branch")
            p.raw(f"s_branch L_rr{i}", "branch")
        for X in ("A", "B", "N"):
            nm = NM[X]
            pars = (0, 1) if X != "N" else (0,)
            for par in pars:
                a = ACC[X][par]
                p.label(f"L_rare{X}{par}")
                p.nop(15)
                p.valu("v_max3_f32", V_M, f"v{a}", f"v{a+1}", f"v{a+2}")
                p.valu("v_max_f32", V_M, V_M, f"v{a+3}")
                self.colmax4(V_M, V_T0)
                p.valu("v_max_f32", V_M, "0", V_M)
                p.valu("v_ceil_f32", V_M, V_M)
                for k in range(4):
                    for aa in sorted(set(ACC[X])):
                        p.valu("v_sub_f32", f"v{aa+k}", f"v{aa+k}", V_M)
                    p.valu("v_sub_f32", f"v{nm+k}", f"v{nm+k}", V_M)
                p.valu("v_sub_f32", V_M, "0", V_M)
                p.valu("v_cvt_i32_f32", V_M, V_M)
                if par == 0 and X != "N":
                    p.raw(f"s_branch L_resc{X}", "branch")
            p.label(f"L_resc{X}")
            for k in range(4):
                p.valu("v_accvgpr_read_b32", V_T0, f"a{A_L[X]+k}")
                p.valu("v_ldexp_f32", V_T0, V_T0, V_M)
                p.valu("v_accvgpr_write_b32", f"a{A_L[X]+k}", V_T0)
            locs = []
            for kt in range(64 if X != "N" else 16):
                t, i = self.preg(X, kt)
                locs += [(t, i), (t, i + 1)]
            self.rescale(locs)
            p.nop(3)
            p.raw(f"s_setpc_b64 {S_RET}", "branch")

    def build(self):
        p = self.p
        self.prologue()
        self.prologue_loads()
        self.prologue_rest()
        self.stamp(0)
        self.stamp(12, reg="s100")
        self.stamp(150, reg="s96")
        self.stamp(151, reg="s94")
        self.stamp(10, cyc=True)
        self.phase0()
        self.phase0_end()
        self.in_stream = True
        self.phase1()
        if self.o.get("dump") == "p":
            rl = []
            for X in ("A", "B"):
                for kt in range(64):
                    t, i = self.preg(X, kt)
                    rl += [f"{t}{i}", f"{t}{i+1}"]
            for kt in range(16):
                t, i = self.preg("N", kt)
                rl += [f"{t}{i}", f"{t}{i+1}"]
            rl += [f"v{NM['A']}", f"v{NM['B']}", f"v{NM['N']}"]
            self.dump_regs(rl)
        self.lphase()
        self.phase2()
        if self.o.get("skel"):
            self.stamp(8)
            p.branch("s_branch", "L_fin")
        self.tail()
        p.label("L_fin")
        if self.o.get("stamps") in (1, 2, 4) and self.o.get("ldsstamp", 1):
            p.opaque([
                f"s_cmp_lg_u32 {S_W}, 0",
                "s_cbranch_scc1 L_done",
                "s_waitcnt lgkmcnt(0)",
                "v_add_u32 v10, 162816, v1",
                "ds_read_b128 v[12:15], v10",
                f"s_lshl_b32 {S_TMP}, s2, 10",
                f"s_add_u32 {S_TMP}, {S_TMP}, {DUMP_BASE}",
                "s_waitcnt lgkmcnt(0)",
                f"buffer_store_dwordx4 v[12:15], v1, {SRD_WS}, {S_TMP} offen",
                "s_waitcnt vmcnt(0)",
            ])
        p.label("L_done")
        p.raw("s_endpgm", "branch")
        self.rare_routines()
        p.label("L_code_end")
        p.raw("s_endpgm", "branch")
        if self.o.get("ilv", 1):
            if self.o.get("ilv0") == 0:
                idx = next(k for k, i in enumerate(p.ins) if i.kind == "label" and i.text == "L_stage7:")
                head, p.ins = p.ins[:idx], p.ins[idx:]
            else:
                head = []
            p.interleave(rd_lead=self.o.get("rdl", 5), raw_lat=self.o.get("rawl", 3), wexp=self.o.get("wexp", 20) / 10.0)
            p.ins = head + p.ins
        p.insert_waits(verbose=True, batch=self.o.get("batch", 10))
        p.insert_nops()
        hdr = [f"; @launch grid=(256,1,1) block=(256,1,1) lds={LDS_BYTES}",
               '.amdgcn_target "amdgcn-amd-amdhsa--gfx950"', ".text", f".globl {KNAME}", ".p2align 8",
               f".type {KNAME},@function", f"{KNAME}:"]
        ftr = ['.section .rodata,"a"', ".p2align 6", f".amdhsa_kernel {KNAME}",
               "  .amdhsa_next_free_vgpr 512", "  .amdhsa_next_free_sgpr 102", "  .amdhsa_accum_offset 256",
               "  .amdhsa_group_segment_fixed_size 0", "  .amdhsa_kernarg_size 104", "  .amdhsa_user_sgpr_count 2",
               "  .amdhsa_user_sgpr_kernarg_segment_ptr 1", "  .amdhsa_system_sgpr_workgroup_id_x 1",
               "  .amdhsa_float_denorm_mode_32 3",
               ".end_amdhsa_kernel"]
        return "\n".join(hdr) + "\n" + p.text() + "\n".join(ftr) + "\n"


def main():
    import argparse
    ap = argparse.ArgumentParser()
    ap.add_argument("-o", default="attn.s")
    ap.add_argument("--dump", default=None)
    ap.add_argument("--stamps", type=int, default=0)
    ap.add_argument("--opt", action="append", default=[])
    a = ap.parse_args()
    opt = dict(dump=a.dump, stamps=a.stamps)
    for kv in a.opt:
        k, v = kv.split("=")
        try:
            v = int(v)
        except ValueError:
            pass
        opt[k] = v
    g = G(opt)
    txt = g.build()
    open(a.o, "w").write(txt)
    print(a.o, len(txt), "bytes;", dict(g.p.stats()))


if __name__ == "__main__":
    main()
```
